```python
import torch

def _softmax(x, axis=-1):
    return torch.softmax(x, dim=axis)

def _gelu(x):
    return torch.nn.functional.gelu(x, approximate='tanh')

def _silu(x):
    return torch.nn.functional.silu(x)

def _sigmoid(x):
    return torch.sigmoid(x)

def _layernorm(x, axis=-1, eps=1e-05):
    m = x.mean(dim=axis, keepdim=True)
    v = x.var(dim=axis, keepdim=True, unbiased=False)
    return (x - m) / torch.sqrt(v + eps)

def _scatter_add(tgt, idx, src, axis=0):
    return tgt.clone().index_add_(axis, idx, src)

def _segment_sum(src, seg, n):
    out = torch.zeros((n,) + src.shape[1:], dtype=src.dtype)
    return out.index_add_(0, seg, src)

def _pad(x, pw):
    flat = tuple((v for pair in reversed(pw) for v in pair))
    return torch.nn.functional.pad(x, flat)
kernel_name = 'standalone__autoregressive_conv_wavernn__speech'

def setup_inputs():

    _w = lambda a: (lambda t: t.to(torch.bfloat16) if t.is_floating_point() else t)(torch.as_tensor(a))
    B, T, D, K = (2, 4000, 512, 3)
    return {'x': _w((lambda *s: torch.randn(*s, dtype=torch.bfloat16) * 0.05)(B, T, D)), 'w': _w((lambda *s: torch.randn(*s, dtype=torch.bfloat16) * 0.05)(K, D, 2 * D))}

def reference(x, w):
    B, T, D = x.shape
    K = w.shape[0]
    dil = 2
    pad = (K - 1) * dil
    xp = _pad(x, ((0, 0), (pad, 0), (0, 0)))
    h = torch.einsum('btd,de->bte', xp[:, 0:T, :], w[0])
    for i in range(1, K):
        h = h + torch.einsum('btd,de->bte', xp[:, i * dil:i * dil + T, :], w[i])
    f, g = (h[..., :D].clone(), h[..., D:].clone())
    return torch.tanh(f) * _sigmoid(g)
```

```python
import sys, argparse

NAME = "standalone__autoregressive_conv_wavernn__speech"

HEADER = """; Kernarg layout for this problem (40 bytes, ptrs only, base s[0:1]):
"""

XSLOT = 32768
WBASE = 65536
WSLOT = 24576
LDS_BYTES = 163840

S_X, S_W, S_O, S_DBG, S_WS = 4, 6, 8, 10, 40
SRD_X, SRD_W, SRD_O, SRD_T = 12, 16, 20, 44
S_WV, S_MT, S_NT, S_T0 = 24, 25, 26, 27
S_SOX, S_SOW, S_SOWP = 28, 29, 30
S_M0X, S_M0W = 31, 32
S_CNT = 33
S_T1, S_T2, S_T3 = 34, 35, 36
S_C1, S_C2 = 38, 48
S_TS = 52

V_XA, V_XB = 1, 5
V_WA = 9
V_DX = 13
V_DW = 21
V_T = 27
V_ACC = 32
ACCUM_OFFSET = 160


class G:
    def __init__(self, a):
        self.a = a
        self.L = []
        self.nts = 0

    def e(self, s):
        self.L.append("    " + s)

    def lab(self, s):
        self.L.append(s + ":")

    def c(self, s):
        self.L.append("    ; " + s)

    def ts(self):
        if self.a.stamp:
            self.e(f"s_memtime s[{S_TS + 2 * self.nts}:{S_TS + 2 * self.nts + 1}]")
            self.nts += 1

    def fx(self, st, s):
        b = st * 48 + s * 4
        return f"a[{b}:{b + 3}]"

    def fw(self, st, i, g, half=None):
        b = st * 48 + 24 + (i * 2 + g) * 4
        if half is None:
            return f"a[{b}:{b + 3}]"
        return f"a[{b + 2 * half}:{b + 2 * half + 1}]"

    def acc(self, a_, g):
        b = V_ACC + (a_ * 2 + g) * 16
        return f"v[{b}:{b + 15}]"

    def reads(self, ks):
        st = ks & 1
        kk = ks & 3
        xs = (ks >> 2) & 1
        ws = (ks >> 1) & 3
        kh = ks & 1
        out = []

        def rx(s):
            if s < 4:
                out.append(f"ds_read_b128 {self.fx(st, s)}, v{V_XA + kk} offset:{xs * XSLOT + s * 256}")
            else:
                out.append(f"ds_read_b128 {self.fx(st, s)}, v{V_XB + kk} offset:{xs * XSLOT + (s - 4) * 256}")

        def rw(i, g):
            for u in range(2):
                off = (ws & 1) * WSLOT + i * 8192 + kh * 4096 + u * 1024
                out.append(f"ds_read_b64_tr_b16 {self.fw(st, i, g, u)}, v{V_WA + g * 2 + (ws >> 1)} offset:{off}")
        rw(0, 0); rx(0); rw(0, 1); rx(1); rx(2); rx(3)
        rw(1, 0); rw(1, 1); rx(4)
        rw(2, 0); rw(2, 1); rx(5)
        return out

    def mfmas(self, ks):
        st = ks & 1
        out = []
        for i in range(3):
            for a_ in range(4):
                for g in range(2):
                    out.append(f"v_mfma_f32_32x32x16_bf16 {self.acc(a_, g)}, {self.fw(st, i, g)}, {self.fx(st, a_ + i)}, {self.acc(a_, g)}")
        return out

    def dma_x(self, slot):
        u = []
        fl = self.a.xflags
        for p in range(8):
            pre = []
            if p % 4 == 0:
                pre = [f"s_add_u32 m0, s{S_M0X}, {slot * XSLOT + p * 1024}", "s_nop 0"]
            ins = pre + [f"buffer_load_dwordx4 v{V_DX + p}, s[{SRD_X}:{SRD_X + 3}], s{S_SOX} offen offset:{(p % 4) * 1024}{fl} lds"]
            if p == 7:
                ins.append(f"s_add_u32 s{S_SOX}, s{S_SOX}, 128")
            u.append(ins)
        return u

    def dma_w(self, slot, part, last):
        u = []
        fl = self.a.wflags
        ps = [4, 5] if part == "hi" else [0, 1, 2, 3]
        for p in ps:
            pre = []
            if p % 4 == 0:
                pre = [f"s_add_u32 m0, s{S_M0W}, {slot * WSLOT + p * 1024}", "s_nop 0"]
            ins = pre + [f"buffer_load_dwordx4 v{V_DW + p}, s[{SRD_W}:{SRD_W + 3}], s{S_SOW} offen offset:{(p % 4) * 1024}{fl} lds"]
            if last and p == ps[-1]:
                ins.append(f"s_add_u32 s{S_SOW}, s{S_SOW}, 65536")
            u.append(ins)
        return u

    def group(self, s):
        u = []
        if s & 1:
            if (s >> 1) + 2 < 8:
                u += self.dma_x((s >> 1) & 1)
            if s + 4 < 16:
                u += self.dma_w(s & 3, "hi", False)
        else:
            if s + 3 < 16:
                u += self.dma_w((s + 3) & 3, "lo", True)
            if s + 4 < 16:
                u += self.dma_w(s & 3, "hi", False) + self.dma_w(s & 3, "lo", True)
        return u

    def bar_vmcnt(self, s):
        if s == 13:
            return 6
        if s == 14:
            return 0
        return 12 if (s & 1) else 16

    def kstep(self, ks, dma_units, last=False):
        a = self.a
        s = ks >> 1
        self.c(f"---- k-step {ks}")
        m = self.mfmas(ks)
        rd = [] if last else self.reads(ks + 1)
        slots = [[] for _ in range(24)]
        first = 0
        head = []
        if ks & 1 and s < 15:
            if a.loader:
                head = ["s_waitcnt lgkmcnt(0)", "s_barrier"]
            else:
                head = [f"s_waitcnt vmcnt({self.bar_vmcnt(s)}) lgkmcnt(0)", "s_barrier"]
        else:
            head = ["s_waitcnt lgkmcnt(0)"]
        for h in head:
            self.e(h)
        for n, r in enumerate(rd):
            slots[n * a.rdspan // 18].append(r)
        nd = len(dma_units)
        for n, u in enumerate(dma_units):
            pos = (n * 24 + a.dmaoff) // max(nd, 1) if nd else 0
            slots[min(pos, 23)] += u
        for i in range(24):
            self.e(m[i])
            for f in slots[i]:
                self.e(f)

    def setup_common(self):
        e = self.e
        e("s_cmp_ge_u32 s2, 256")
        e("s_cbranch_scc1 L_end")
        e(f"s_load_dwordx4 s[{S_X}:{S_X + 3}], s[0:1], 0")
        e(f"s_load_dwordx2 s[{S_O}:{S_O + 1}], s[0:1], 16")
        if self.a.stamp:
            e(f"s_load_dwordx2 s[{S_WS}:{S_WS + 1}], s[0:1], 32")
            e("s_memrealtime s[50:51]")
        self.ts()
        e("v_lshrrev_b32 v27, 6, v0")
        e("v_and_b32 v0, 63, v0")
        e(f"v_readfirstlane_b32 s{S_WV}, v27")
        e(f"s_lshr_b32 s{S_T1}, s2, 3")
        e(f"s_bfe_u32 s{S_MT}, s2, 0x20001")
        e(f"s_lshl_b32 s{S_MT}, s{S_MT}, 3")
        e(f"s_lshr_b32 s{S_T2}, s{S_T1}, 2")
        e(f"s_add_u32 s{S_MT}, s{S_MT}, s{S_T2}")
        e(f"s_and_b32 s{S_NT}, s2, 1")
        e(f"s_lshl_b32 s{S_NT}, s{S_NT}, 2")
        e(f"s_and_b32 s{S_T2}, s{S_T1}, 3")
        e(f"s_add_u32 s{S_NT}, s{S_NT}, s{S_T2}")
        e(f"s_and_b32 s{S_T0}, s{S_MT}, 15")
        e(f"s_mul_i32 s{S_T0}, s{S_T0}, 250")
        e(f"s_lshr_b32 s{S_T3}, s{S_MT}, 4")
        e(f"s_mul_i32 s{S_T3}, s{S_T3}, 4096000")

    def setup_dma(self):
        e = self.e
        e(f"s_lshl_b32 s{S_T1}, s{S_WV}, 6")
        e(f"s_add_u32 s{S_T1}, s{S_T1}, s{S_T0}")
        e(f"s_sub_u32 s{S_T1}, s{S_T1}, 4")
        e("v_lshrrev_b32 v27, 3, v0")
        e(f"v_add_u32 v27, s{S_T1}, v27")
        e("v_and_b32 v28, 7, v0")
        e("v_cmp_gt_i32 vcc, 0, v27")
        e("v_lshlrev_b32 v27, 10, v27")
        e("v_lshlrev_b32 v28, 4, v28")
        for pp in range(8):
            e(f"v_xor_b32 v29, {pp * 16}, v28")
            k = pp * 8192 - (pp & 3) * 1024
            if k:
                e(f"v_add_u32 v29, {k}, v29")
            e(f"v_add_u32 v{V_DX + pp}, v27, v29")
        e(f"v_mov_b32 v29, 0x80000000")
        e(f"v_cndmask_b32 v{V_DX}, v{V_DX}, v29, vcc")
        e("v_lshrrev_b32 v27, 4, v0")
        e("v_bfe_u32 v28, v0, 2, 2")
        e("v_xor_b32 v28, v27, v28")
        e("v_lshlrev_b32 v27, 11, v27")
        e("v_and_b32 v29, 1, v28")
        e("v_lshl_add_u32 v27, v29, 6, v27")
        e("v_lshrrev_b32 v29, 1, v28")
        e("v_lshl_add_u32 v27, v29, 10, v27")
        e("v_and_b32 v29, 3, v0")
        e("v_lshl_add_u32 v27, v29, 4, v27")
        e(f"s_lshl_b32 s{S_T1}, s{S_NT}, 7")
        e(f"v_add_u32 v27, s{S_T1}, v27")
        e(f"s_mul_i32 s{S_T1}, s{S_WV}, 6")
        for pp in range(6):
            e(f"s_add_u32 s{S_T2}, s{S_T1}, {pp}")
            e(f"s_lshr_b32 s37, s{S_T2}, 3")
            e(f"s_lshl_b32 s37, s37, 20")
            e(f"s_and_b32 s{S_T2}, s{S_T2}, 7")
            e(f"s_lshl_b32 s{S_T2}, s{S_T2}, 13")
            e(f"s_add_u32 s{S_T2}, s{S_T2}, s37")
            if pp & 3:
                e(f"s_sub_u32 s{S_T2}, s{S_T2}, {(pp & 3) * 1024}")
            e(f"v_add_u32 v{V_DW + pp}, s{S_T2}, v27")
        e(f"s_lshl_b32 s{S_M0X}, s{S_WV}, 13")
        e(f"s_mul_i32 s{S_M0W}, s{S_WV}, 6144")
        e(f"s_add_u32 s{S_M0W}, s{S_M0W}, {WBASE}")
        e(f"s_mov_b32 s{S_SOX}, 0")
        e(f"s_mov_b32 s{S_SOW}, 0")
        e(f"s_mov_b32 s{SRD_X + 2}, 4096000")
        e(f"s_mov_b32 s{SRD_X + 3}, 0x20000")
        e(f"s_mov_b32 s{SRD_W + 2}, 3145728")
        e(f"s_mov_b32 s{SRD_W + 3}, 0x20000")
        e("s_waitcnt lgkmcnt(0)")
        e(f"s_add_u32 s{SRD_X}, s{S_X}, s{S_T3}")
        e(f"s_addc_u32 s{SRD_X + 1}, s{S_X + 1}, 0")
        e(f"s_mov_b32 s{SRD_W}, s{S_W}")
        e(f"s_mov_b32 s{SRD_W + 1}, s{S_W + 1}")

    def prologue_units(self):
        u = self.dma_x(0)
        for st in range(3):
            u += self.dma_w(st, "hi", False) + self.dma_w(st, "lo", True)
        return u

    def setup_compute(self):
        e = self.e
        e(f"s_lshr_b32 s{S_T1}, s{S_WV}, 1")
        e(f"s_and_b32 s{S_T2}, s{S_WV}, 1")
        e("v_bfe_u32 v27, v0, 1, 4")
        e("v_and_b32 v28, 1, v0")
        e("v_lshrrev_b32 v29, 5, v0")
        e("v_lshl_add_u32 v30, v27, 3, v28")
        e(f"s_lshl_b32 s37, s{S_T1}, 7")
        e(f"v_add_u32 v30, s37, v30")
        e("v_lshlrev_b32 v31, 7, v30")
        e("v_and_b32 v28, 7, v27")
        e("v_xor_b32 v28, v28, v29")
        for kk in range(4):
            e(f"v_xor_b32 v{V_XA + kk}, {2 * kk}, v28")
            e(f"v_lshl_add_u32 v{V_XA + kk}, v{V_XA + kk}, 4, v31")
        e("v_add_u32 v28, 1, v27")
        e("v_and_b32 v28, 7, v28")
        e("v_xor_b32 v28, v28, v29")
        e("v_add_u32 v31, 1024, v31")
        for kk in range(4):
            e(f"v_xor_b32 v{V_XB + kk}, {2 * kk}, v28")
            e(f"v_lshl_add_u32 v{V_XB + kk}, v{V_XB + kk}, 4, v31")
        e("v_lshlrev_b32 v30, 10, v30")
        e("v_lshl_add_u32 v30, v29, 5, v30")
        e(f"s_lshl_b32 s37, s{S_NT}, 1")
        e(f"s_add_u32 s37, s37, s{S_T2}")
        e(f"s_lshl_b32 s37, s37, 6")
        e(f"v_add_u32 v30, s37, v30")
        e("v_bfe_u32 v27, v0, 2, 2")
        e("v_lshl_add_u32 v28, v29, 3, v27")
        e("v_lshlrev_b32 v28, 8, v28")
        e("v_and_b32 v31, 1, v0")
        e("v_lshl_add_u32 v28, v31, 5, v28")
        e("v_bfe_u32 v31, v0, 1, 1")
        e("v_lshl_add_u32 v28, v31, 3, v28")
        e("v_bfe_u32 v31, v0, 4, 1")
        e("v_lshl_add_u32 v28, v31, 4, v28")
        e(f"v_add_u32 v28, {WBASE}, v28")
        for g in range(2):
            e(f"s_add_u32 s37, s{S_T2}, {2 * g}")
            e(f"v_xor_b32 v31, s37, v27")
            e(f"v_lshl_add_u32 v{V_WA + 2 * g}, v31, 6, v28")
            e(f"v_add_u32 v{V_WA + 2 * g + 1}, {2 * WSLOT}, v{V_WA + 2 * g}")
        for i in range(128):
            e(f"v_mov_b32 v{V_ACC + i}, 0")
        e(f"s_lshl_b32 s37, s{S_T0}, 10")
        e(f"s_add_u32 s37, s37, s{S_T3}")
        e(f"s_mov_b32 s{SRD_O + 2}, 256000")
        e(f"s_mov_b32 s{SRD_O + 3}, 0x20000")
        e(f"s_mov_b32 s{S_C1}, 0xc038aa3b")
        e(f"s_mov_b32 s{S_C1 + 1}, 0xc038aa3b")
        e(f"s_mov_b32 s{S_C2}, 0xbfb8aa3b")
        e(f"s_mov_b32 s{S_C2 + 1}, 0xbfb8aa3b")
        e("s_waitcnt lgkmcnt(0)")
        e(f"s_add_u32 s{SRD_O}, s{S_O}, s37")
        e(f"s_addc_u32 s{SRD_O + 1}, s{S_O + 1}, 0")

    def epilogue(self):
        e = self.e
        self.c("---- epilogue: tanh(f)*sigmoid(g) = (1-ea) / ((1+ea)(1+eb)), ea = e^(-2f), eb = e^(-g)")
        e("s_nop 7")
        e("s_nop 3")
        for a_ in range(4):
            F = V_ACC + (a_ * 2) * 16
            Gg = F + 16
            for r in range(0, 16, 2):
                e(f"v_pk_mul_f32 v[{F + r}:{F + r + 1}], v[{F + r}:{F + r + 1}], s[{S_C1}:{S_C1 + 1}]")
                e(f"v_pk_mul_f32 v[{Gg + r}:{Gg + r + 1}], v[{Gg + r}:{Gg + r + 1}], s[{S_C2}:{S_C2 + 1}]")
            for r in range(16):
                e(f"v_min_f32 v{F + r}, 0x41f00000, v{F + r}")
                e(f"v_exp_f32 v{Gg + r}, v{Gg + r}")
            for r in range(16):
                e(f"v_exp_f32 v{F + r}, v{F + r}")
            T = 2
            for r in range(0, 16, 2):
                e(f"v_pk_add_f32 v[{T + r}:{T + r + 1}], v[{F + r}:{F + r + 1}], 1.0 op_sel_hi:[1,0]")
            for r in range(0, 16, 2):
                e(f"v_pk_fma_f32 v[{Gg + r}:{Gg + r + 1}], v[{T + r}:{T + r + 1}], v[{Gg + r}:{Gg + r + 1}], v[{T + r}:{T + r + 1}]")
            for r in range(0, 16, 2):
                e(f"v_rcp_f32 v{Gg + r}, v{Gg + r}")
                e(f"v_rcp_f32 v{Gg + r + 1}, v{Gg + r + 1}")
                e(f"v_pk_add_f32 v[{F + r}:{F + r + 1}], v[{F + r}:{F + r + 1}], 1.0 op_sel_hi:[1,0] neg_lo:[1,0] neg_hi:[1,0]")
            for r in range(0, 16, 2):
                e(f"v_pk_mul_f32 v[{F + r}:{F + r + 1}], v[{F + r}:{F + r + 1}], v[{Gg + r}:{Gg + r + 1}]")
            for r in range(0, 16, 2):
                e(f"v_cvt_pk_bf16_f32 v{Gg + r // 2}, v{F + r}, v{F + r + 1}")
            if a_ == 2:
                e("v_add_u32 v30, 4096, v30")
            off = (a_ & 1) * 2048
            e(f"buffer_store_dwordx4 v[{Gg}:{Gg + 3}], v30, s[{SRD_O}:{SRD_O + 3}], 0 offen offset:{off}{self.a.oflags}")
            e(f"buffer_store_dwordx4 v[{Gg + 4}:{Gg + 7}], v30, s[{SRD_O}:{SRD_O + 3}], 0 offen offset:{off + 16}{self.a.oflags}")

    def stamps_out(self):
        if not self.a.stamp:
            return
        e = self.e
        e("s_waitcnt vmcnt(0)")
        self.ts()
        e("s_waitcnt lgkmcnt(0)")
        e(f"s_mov_b32 s{SRD_T}, s{S_WS}")
        e(f"s_mov_b32 s{SRD_T + 1}, s{S_WS + 1}")
        e(f"s_mov_b32 s{SRD_T + 2}, 0x100000")
        e(f"s_mov_b32 s{SRD_T + 3}, 0x20000")
        e(f"s_lshl_b32 s37, s2, 3")
        e(f"s_add_u32 s37, s37, s{S_WV}")
        e(f"s_lshl_b32 s37, s37, 8")
        e("s_getreg_b32 s36, hwreg(HW_REG_XCC_ID)")
        e("v_mov_b32 v1, s37")
        e("v_mov_b32 v2, s36")
        e(f"buffer_store_dword v2, v1, s[{SRD_T}:{SRD_T + 3}], 0 offen offset:252")
        e("s_memrealtime s[36:37]")
        e("s_waitcnt lgkmcnt(0)")
        e("v_mov_b32 v3, s36")
        e(f"buffer_store_dword v3, v1, s[{SRD_T}:{SRD_T + 3}], 0 offen offset:248")
        e("v_mov_b32 v31, s50")
        e(f"buffer_store_dword v31, v1, s[{SRD_T}:{SRD_T + 3}], 0 offen offset:244")
        for n in range(self.nts):
            e(f"v_mov_b32 v{4 + n}, s{S_TS + 2 * n}")
            e(f"buffer_store_dword v{4 + n}, v1, s[{SRD_T}:{SRD_T + 3}], 0 offen offset:{4 * n}")

    def build(self):
        a = self.a
        e = self.e
        nthreads = 512 if a.loader else 256
        self.L.append(HEADER + f"; @launch grid=(256,1,1) block=({nthreads},1,1) lds={LDS_BYTES}")
        self.L.append(f""".amdgcn_target "amdgcn-amd-amdhsa--gfx950"
.text
.globl {NAME}_kernel
.p2align 8
.type {NAME}_kernel,@function
{NAME}_kernel:""")
        self.setup_common()
        n1 = a.n1
        if a.loader:
            e(f"s_cmp_ge_u32 s{S_WV}, 4")
            e("s_cbranch_scc1 L_loader")
        else:
            self.setup_dma()
            for u in self.prologue_units() + self.group(-1)[:n1]:
                for i in u:
                    e(i)
        self.setup_compute()
        self.ts()
        if a.loader:
            e("s_barrier")
        else:
            e(f"s_waitcnt vmcnt({12 + n1})")
            e("s_barrier")
        self.ts()
        for r in self.reads(0):
            e(r)

        def units(ks):
            if a.loader:
                return []
            if ks & 1:
                return self.group(ks >> 1)[:n1]
            return self.group((ks >> 1) - 1)[n1:]
        if a.full:
            for ks in range(32):
                self.kstep(ks, units(ks), last=(ks == 31))
                if ks % 8 == 7:
                    self.ts()
        else:
            e(f"s_mov_b32 s{S_CNT}, 3")
            self.L.append(".p2align 6")
            self.lab("L_loop")
            for ks in range(8):
                self.kstep(ks, units(ks))
            e(f"s_sub_u32 s{S_CNT}, s{S_CNT}, 1")
            e(f"s_cmp_lg_u32 s{S_CNT}, 0")
            e("s_cbranch_scc1 L_loop")
            self.ts()
            for ks in range(24, 32):
                self.kstep(ks, units(ks), last=(ks == 31))
            self.ts()
        self.epilogue()
        self.ts()
        self.stamps_out()
        self.lab("L_end")
        e("s_endpgm")
        if a.loader:
            self.lab("L_loader")
            e(f"s_sub_u32 s{S_WV}, s{S_WV}, 4")
            self.setup_dma()
            for u in self.prologue_units() + self.group(-1):
                for i in u:
                    e(i)
            e("s_waitcnt vmcnt(22)")
            e("s_barrier")
            for s in range(15):
                e(f"s_waitcnt vmcnt({self.bar_vmcnt(s)})")
                e("s_barrier")
                for u in self.group(s):
                    for i in u:
                        e(i)
            e("s_endpgm")
        self.L.append(f""".section .rodata,"a"
.p2align 6
.amdhsa_kernel {NAME}_kernel
  .amdhsa_next_free_vgpr 256
  .amdhsa_next_free_sgpr 102
  .amdhsa_accum_offset {ACCUM_OFFSET}
  .amdhsa_group_segment_fixed_size 0
  .amdhsa_kernarg_size 40
  .amdhsa_user_sgpr_count 2
  .amdhsa_user_sgpr_kernarg_segment_ptr 1
  .amdhsa_system_sgpr_workgroup_id_x 1
.end_amdhsa_kernel""")
        return "\n".join(self.L) + "\n"


def main():
    p = argparse.ArgumentParser()
    p.add_argument("-o", default="-")
    p.add_argument("--loader", type=int, default=0)
    p.add_argument("--full", type=int, default=0)
    p.add_argument("--stamp", type=int, default=0)
    p.add_argument("--n1", type=int, default=5)
    p.add_argument("--rdspan", type=int, default=18)
    p.add_argument("--dmaoff", type=int, default=8)
    p.add_argument("--xflags", default="")
    p.add_argument("--wflags", default="")
    p.add_argument("--oflags", default="")
    a = p.parse_args()
    for k in ("xflags", "wflags", "oflags"):
        v = getattr(a, k)
        if v:
            setattr(a, k, " " + v.replace(",", " "))
    s = G(a).build()
    if a.o == "-":
        sys.stdout.write(s)
    else:
        open(a.o, "w").write(s)


if __name__ == "__main__":
    main()
```

```python
import sys, argparse

NAME = "standalone__autoregressive_conv_wavernn__speech"

HEADER = """; Kernarg layout for this problem (40 bytes, ptrs only, base s[0:1]):
"""

XSLOT = 32768
WBASE = 65536
WSLOT = 24576
LDS_BYTES = 163840

S_X, S_W, S_O, S_DBG, S_WS = 4, 6, 8, 10, 40
SRD_X, SRD_W, SRD_O, SRD_T = 12, 16, 20, 44
S_WV, S_MT, S_NT, S_T0 = 24, 25, 26, 27
S_SOX, S_SOW, S_SOWP = 28, 29, 30
S_M0X, S_M0W = 31, 32
S_CNT = 33
S_T1, S_T2, S_T3 = 34, 35, 36
S_C1, S_C2 = 38, 48
S_TS = 52

V_XA, V_XB = 1, 5
V_WA = 9
V_DX = 13
V_DW = 21
V_T = 27
V_ACC = 32
ACCUM_OFFSET = 160


class G:
    def __init__(self, a):
        self.a = a
        self.L = []
        self.nts = 0

    def e(self, s):
        self.L.append("    " + s)

    def lab(self, s):
        self.L.append(s + ":")

    def c(self, s):
        self.L.append("    ; " + s)

    def ts(self):
        if self.a.stamp:
            op = "s_memrealtime" if self.a.stamp % 10 == 2 else "s_memtime"
            self.e(f"{op} s[{S_TS + 2 * self.nts}:{S_TS + 2 * self.nts + 1}]")
            self.nts += 1

    def fx(self, st, s):
        b = st * 48 + s * 4
        return f"a[{b}:{b + 3}]"

    def fw(self, st, i, g, half=None):
        b = st * 48 + 24 + (i * 2 + g) * 4
        if half is None:
            return f"a[{b}:{b + 3}]"
        return f"a[{b + 2 * half}:{b + 2 * half + 1}]"

    def acc(self, a_, g):
        b = V_ACC + (a_ * 2 + g) * 16
        return f"v[{b}:{b + 15}]"

    def reads(self, ks):
        st = ks & 1
        kk = ks & 3
        xs = (ks >> 2) & 1
        ws = (ks >> 1) & 3
        kh = ks & 1
        out = []

        def rx(s):
            if s < 4:
                out.append(f"ds_read_b128 {self.fx(st, s)}, v{V_XA + kk} offset:{xs * XSLOT + s * 256}")
            else:
                out.append(f"ds_read_b128 {self.fx(st, s)}, v{V_XB + kk} offset:{xs * XSLOT + (s - 4) * 256}")

        def rw(i, g):
            for u in range(2):
                off = (ws & 1) * WSLOT + i * 8192 + kh * 4096 + u * 1024
                out.append(f"ds_read_b64_tr_b16 {self.fw(st, i, g, u)}, v{V_WA + g * 2 + (ws >> 1)} offset:{off}")
        rw(0, 0); rx(0); rw(0, 1); rx(1); rx(2); rx(3)
        rw(1, 0); rw(1, 1); rx(4)
        rw(2, 0); rw(2, 1); rx(5)
        return out

    def mfmas(self, ks):
        st = ks & 1
        out = []
        for i in range(3):
            for a_ in range(4):
                for g in range(2):
                    out.append(f"v_mfma_f32_32x32x16_bf16 {self.acc(a_, g)}, {self.fw(st, i, g)}, {self.fx(st, a_ + i)}, {self.acc(a_, g)}")
        return out

    def dma_x(self, slot):
        u = []
        fl = self.a.xflags
        for p in range(8):
            pre = []
            if p % 4 == 0:
                pre = [f"s_add_u32 m0, s{S_M0X}, {slot * XSLOT + p * 1024}", "s_nop 0"]
            ins = pre + [f"buffer_load_dwordx4 v{V_DX + p}, s[{SRD_X}:{SRD_X + 3}], s{S_SOX} offen offset:{(p % 4) * 1024}{fl} lds"]
            if p == 7:
                ins.append(f"s_add_u32 s{S_SOX}, s{S_SOX}, 128")
            u.append(ins)
        return u

    def dma_w(self, slot, part, last):
        u = []
        fl = self.a.wflags
        ps = [4, 5] if part == "hi" else [0, 1, 2, 3]
        for p in ps:
            pre = []
            if p % 4 == 0:
                pre = [f"s_add_u32 m0, s{S_M0W}, {slot * WSLOT + p * 1024}", "s_nop 0"]
            ins = pre + [f"buffer_load_dwordx4 v{V_DW + p}, s[{SRD_W}:{SRD_W + 3}], s{S_SOW} offen offset:{(p % 4) * 1024}{fl} lds"]
            if last and p == ps[-1]:
                ins.append(f"s_add_u32 s{S_SOW}, s{S_SOW}, 65536")
            u.append(ins)
        return u

    def group(self, s):
        u = []
        if s & 1:
            if (s >> 1) + 2 < 8:
                u += self.dma_x((s >> 1) & 1)
            if s + 4 < 16:
                u += self.dma_w(s & 3, "hi", False)
        else:
            if s + 3 < 16:
                u += self.dma_w((s + 3) & 3, "lo", True)
            if s + 4 < 16:
                u += self.dma_w(s & 3, "hi", False) + self.dma_w(s & 3, "lo", True)
        return u

    def bar_vmcnt(self, s):
        if s == 13:
            return 6
        if s == 14:
            return 0
        return 12 if (s & 1) else 16

    def kstep(self, ks, dma_units, last=False):
        a = self.a
        s = ks >> 1
        self.c(f"---- k-step {ks}")
        m = self.mfmas(ks)
        rd = [] if last else self.reads(ks + 1)
        slots = [[] for _ in range(24)]
        first = 0
        head = []
        if ks & 1 and s < 15:
            if a.loader:
                head = ["s_waitcnt lgkmcnt(0)", "s_barrier"]
            else:
                head = [f"s_waitcnt vmcnt({self.bar_vmcnt(s)}) lgkmcnt(0)", "s_barrier"]
        else:
            head = ["s_waitcnt lgkmcnt(0)"]
        for h in head:
            self.e(h)
        for n, r in enumerate(rd):
            slots[n * a.rdspan // 18].append(r)
        nd = len(dma_units)
        for n, u in enumerate(dma_units):
            pos = (n * 24 + a.dmaoff) // max(nd, 1) if nd else 0
            slots[min(pos, 23)] += u
        for i in range(24):
            self.e(m[i])
            for f in slots[i]:
                self.e(f)

    def setup_common(self):
        e = self.e
        e("s_cmp_ge_u32 s2, 256")
        e("s_cbranch_scc1 L_end")
        e(f"s_load_dwordx4 s[{S_X}:{S_X + 3}], s[0:1], 0")
        e(f"s_load_dwordx2 s[{S_O}:{S_O + 1}], s[0:1], 16")
        if self.a.stamp:
            e(f"s_load_dwordx2 s[{S_WS}:{S_WS + 1}], s[0:1], {24 if self.a.stamp >= 10 else 32}")
            e("s_memrealtime s[50:51]")
        self.ts()
        e("v_lshrrev_b32 v27, 6, v0")
        e("v_and_b32 v0, 63, v0")
        e(f"v_readfirstlane_b32 s{S_WV}, v27")
        e(f"s_lshr_b32 s{S_T1}, s2, 3")
        e(f"s_bfe_u32 s{S_MT}, s2, 0x20001")
        e(f"s_lshl_b32 s{S_MT}, s{S_MT}, 3")
        e(f"s_lshr_b32 s{S_T2}, s{S_T1}, 2")
        e(f"s_add_u32 s{S_MT}, s{S_MT}, s{S_T2}")
        e(f"s_and_b32 s{S_NT}, s2, 1")
        e(f"s_lshl_b32 s{S_NT}, s{S_NT}, 2")
        e(f"s_and_b32 s{S_T2}, s{S_T1}, 3")
        e(f"s_add_u32 s{S_NT}, s{S_NT}, s{S_T2}")
        e(f"s_and_b32 s{S_T0}, s{S_MT}, 15")
        e(f"s_mul_i32 s{S_T0}, s{S_T0}, 250")
        e(f"s_lshr_b32 s{S_T3}, s{S_MT}, 4")
        e(f"s_mul_i32 s{S_T3}, s{S_T3}, 4096000")

    def setup_dma(self):
        e = self.e
        e(f"s_lshl_b32 s{S_T1}, s{S_WV}, 6")
        e(f"s_add_u32 s{S_T1}, s{S_T1}, s{S_T0}")
        e(f"s_sub_u32 s{S_T1}, s{S_T1}, 4")
        e("v_lshrrev_b32 v27, 3, v0")
        e(f"v_add_u32 v27, s{S_T1}, v27")
        e("v_and_b32 v28, 7, v0")
        e("v_cmp_gt_i32 vcc, 0, v27")
        e("v_lshlrev_b32 v27, 10, v27")
        e("v_lshlrev_b32 v28, 4, v28")
        for pp in range(8):
            e(f"v_xor_b32 v29, {pp * 16}, v28")
            k = pp * 8192 - (pp & 3) * 1024
            if k:
                e(f"v_add_u32 v29, {k}, v29")
            e(f"v_add_u32 v{V_DX + pp}, v27, v29")
        e(f"v_mov_b32 v29, 0x80000000")
        e(f"v_cndmask_b32 v{V_DX}, v{V_DX}, v29, vcc")
        e("v_lshrrev_b32 v27, 4, v0")
        e("v_bfe_u32 v28, v0, 2, 2")
        e("v_xor_b32 v28, v27, v28")
        e("v_lshlrev_b32 v27, 11, v27")
        e("v_and_b32 v29, 1, v28")
        e("v_lshl_add_u32 v27, v29, 6, v27")
        e("v_lshrrev_b32 v29, 1, v28")
        e("v_lshl_add_u32 v27, v29, 10, v27")
        e("v_and_b32 v29, 3, v0")
        e("v_lshl_add_u32 v27, v29, 4, v27")
        e(f"s_lshl_b32 s{S_T1}, s{S_NT}, 7")
        e(f"v_add_u32 v27, s{S_T1}, v27")
        e(f"s_mul_i32 s{S_T1}, s{S_WV}, 6")
        for pp in range(6):
            e(f"s_add_u32 s{S_T2}, s{S_T1}, {pp}")
            e(f"s_lshr_b32 s37, s{S_T2}, 3")
            e(f"s_lshl_b32 s37, s37, 20")
            e(f"s_and_b32 s{S_T2}, s{S_T2}, 7")
            e(f"s_lshl_b32 s{S_T2}, s{S_T2}, 13")
            e(f"s_add_u32 s{S_T2}, s{S_T2}, s37")
            if pp & 3:
                e(f"s_sub_u32 s{S_T2}, s{S_T2}, {(pp & 3) * 1024}")
            e(f"v_add_u32 v{V_DW + pp}, s{S_T2}, v27")
        e(f"s_lshl_b32 s{S_M0X}, s{S_WV}, 13")
        e(f"s_mul_i32 s{S_M0W}, s{S_WV}, 6144")
        e(f"s_add_u32 s{S_M0W}, s{S_M0W}, {WBASE}")
        e(f"s_mov_b32 s{S_SOX}, 0")
        e(f"s_mov_b32 s{S_SOW}, 0")
        e(f"s_mov_b32 s{SRD_X + 2}, 4096000")
        e(f"s_mov_b32 s{SRD_X + 3}, 0x20000")
        e(f"s_mov_b32 s{SRD_W + 2}, 3145728")
        e(f"s_mov_b32 s{SRD_W + 3}, 0x20000")
        e("s_waitcnt lgkmcnt(0)")
        e(f"s_add_u32 s{SRD_X}, s{S_X}, s{S_T3}")
        e(f"s_addc_u32 s{SRD_X + 1}, s{S_X + 1}, 0")
        e(f"s_mov_b32 s{SRD_W}, s{S_W}")
        e(f"s_mov_b32 s{SRD_W + 1}, s{S_W + 1}")

    def prologue_units(self):
        u = self.dma_x(0)
        for st in range(3):
            u += self.dma_w(st, "hi", False) + self.dma_w(st, "lo", True)
        return u

    def setup_compute(self):
        e = self.e
        e(f"s_lshr_b32 s{S_T1}, s{S_WV}, 1")
        e(f"s_and_b32 s{S_T2}, s{S_WV}, 1")
        e("v_bfe_u32 v27, v0, 1, 4")
        e("v_and_b32 v28, 1, v0")
        e("v_lshrrev_b32 v29, 5, v0")
        e("v_lshl_add_u32 v30, v27, 3, v28")
        e(f"s_lshl_b32 s37, s{S_T1}, 7")
        e(f"v_add_u32 v30, s37, v30")
        e("v_lshlrev_b32 v31, 7, v30")
        e("v_and_b32 v28, 7, v27")
        e("v_xor_b32 v28, v28, v29")
        for kk in range(4):
            e(f"v_xor_b32 v{V_XA + kk}, {2 * kk}, v28")
            e(f"v_lshl_add_u32 v{V_XA + kk}, v{V_XA + kk}, 4, v31")
        e("v_add_u32 v28, 1, v27")
        e("v_and_b32 v28, 7, v28")
        e("v_xor_b32 v28, v28, v29")
        e("v_add_u32 v31, 1024, v31")
        for kk in range(4):
            e(f"v_xor_b32 v{V_XB + kk}, {2 * kk}, v28")
            e(f"v_lshl_add_u32 v{V_XB + kk}, v{V_XB + kk}, 4, v31")
        e("v_lshlrev_b32 v30, 10, v30")
        e("v_lshl_add_u32 v30, v29, 5, v30")
        e(f"s_lshl_b32 s37, s{S_NT}, 1")
        e(f"s_add_u32 s37, s37, s{S_T2}")
        e(f"s_lshl_b32 s37, s37, 6")
        e(f"v_add_u32 v30, s37, v30")
        e("v_bfe_u32 v27, v0, 2, 2")
        e("v_lshl_add_u32 v28, v29, 3, v27")
        e("v_lshlrev_b32 v28, 8, v28")
        e("v_and_b32 v31, 1, v0")
        e("v_lshl_add_u32 v28, v31, 5, v28")
        e("v_bfe_u32 v31, v0, 1, 1")
        e("v_lshl_add_u32 v28, v31, 3, v28")
        e("v_bfe_u32 v31, v0, 4, 1")
        e("v_lshl_add_u32 v28, v31, 4, v28")
        e(f"v_add_u32 v28, {WBASE}, v28")
        for g in range(2):
            e(f"s_add_u32 s37, s{S_T2}, {2 * g}")
            e(f"v_xor_b32 v31, s37, v27")
            e(f"v_lshl_add_u32 v{V_WA + 2 * g}, v31, 6, v28")
            e(f"v_add_u32 v{V_WA + 2 * g + 1}, {2 * WSLOT}, v{V_WA + 2 * g}")
        for i in range(128):
            e(f"v_mov_b32 v{V_ACC + i}, 0")
        e(f"s_lshl_b32 s37, s{S_T0}, 10")
        e(f"s_add_u32 s37, s37, s{S_T3}")
        e(f"s_mov_b32 s{SRD_O + 2}, 256000")
        e(f"s_mov_b32 s{SRD_O + 3}, 0x20000")
        e(f"s_mov_b32 s{S_C1}, 0xc038aa3b")
        e(f"s_mov_b32 s{S_C1 + 1}, 0xc038aa3b")
        e(f"s_mov_b32 s{S_C2}, 0xbfb8aa3b")
        e(f"s_mov_b32 s{S_C2 + 1}, 0xbfb8aa3b")
        e("s_waitcnt lgkmcnt(0)")
        e(f"s_add_u32 s{SRD_O}, s{S_O}, s37")
        e(f"s_addc_u32 s{SRD_O + 1}, s{S_O + 1}, 0")

    def epilogue(self):
        e = self.e
        self.c("---- epilogue: tanh(f)*sigmoid(g) = (1-ea) / ((1+ea)(1+eb)), ea = e^(-2f), eb = e^(-g)")
        e("s_nop 7")
        e("s_nop 3")
        for a_ in range(4):
            F = V_ACC + (a_ * 2) * 16
            Gg = F + 16
            for r in range(0, 16, 2):
                e(f"v_pk_mul_f32 v[{F + r}:{F + r + 1}], v[{F + r}:{F + r + 1}], s[{S_C1}:{S_C1 + 1}]")
                e(f"v_pk_mul_f32 v[{Gg + r}:{Gg + r + 1}], v[{Gg + r}:{Gg + r + 1}], s[{S_C2}:{S_C2 + 1}]")
            for r in range(16):
                e(f"v_min_f32 v{F + r}, 0x41f00000, v{F + r}")
                e(f"v_exp_f32 v{Gg + r}, v{Gg + r}")
            for r in range(16):
                e(f"v_exp_f32 v{F + r}, v{F + r}")
            T = 2
            for r in range(0, 16, 2):
                e(f"v_pk_add_f32 v[{T + r}:{T + r + 1}], v[{F + r}:{F + r + 1}], 1.0 op_sel_hi:[1,0]")
            for r in range(0, 16, 2):
                e(f"v_pk_fma_f32 v[{Gg + r}:{Gg + r + 1}], v[{T + r}:{T + r + 1}], v[{Gg + r}:{Gg + r + 1}], v[{T + r}:{T + r + 1}]")
            for r in range(0, 16, 2):
                e(f"v_rcp_f32 v{Gg + r}, v{Gg + r}")
                e(f"v_rcp_f32 v{Gg + r + 1}, v{Gg + r + 1}")
                e(f"v_pk_add_f32 v[{F + r}:{F + r + 1}], v[{F + r}:{F + r + 1}], 1.0 op_sel_hi:[1,0] neg_lo:[1,0] neg_hi:[1,0]")
            for r in range(0, 16, 2):
                e(f"v_pk_mul_f32 v[{F + r}:{F + r + 1}], v[{F + r}:{F + r + 1}], v[{Gg + r}:{Gg + r + 1}]")
            for r in range(0, 16, 2):
                e(f"v_cvt_pk_bf16_f32 v{Gg + r // 2}, v{F + r}, v{F + r + 1}")
            if a_ == 2:
                e("v_add_u32 v30, 4096, v30")
            off = (a_ & 1) * 2048
            e(f"buffer_store_dwordx4 v[{Gg}:{Gg + 3}], v30, s[{SRD_O}:{SRD_O + 3}], 0 offen offset:{off}{self.a.oflags}")
            e(f"buffer_store_dwordx4 v[{Gg + 4}:{Gg + 7}], v30, s[{SRD_O}:{SRD_O + 3}], 0 offen offset:{off + 16}{self.a.oflags}")

    def stamps_out(self):
        if not self.a.stamp:
            return
        e = self.e
        e("s_waitcnt vmcnt(0)")
        self.ts()
        e("s_waitcnt lgkmcnt(0)")
        if self.a.stamp >= 10:
            e(f"s_mov_b32 s{SRD_T}, s{S_WS}")
            e(f"s_mov_b32 s{SRD_T + 1}, s{S_WS + 1}")
            e(f"s_mov_b32 s{SRD_T + 2}, 256")
            e(f"s_mov_b32 s{SRD_T + 3}, 0x20000")
            e("s_memrealtime s[36:37]")
            e("s_waitcnt lgkmcnt(0)")
            e("s_mov_b64 exec, 1")
            e("v_mov_b32 v1, 0")
            e("v_mov_b32 v2, s36")
            e("s_not_b32 s36, s50")
            e("v_mov_b32 v3, s36")
            e("v_mov_b32 v4, s50")
            e(f"buffer_atomic_umax v2, v1, s[{SRD_T}:{SRD_T + 3}], 0 offen offset:0")
            e(f"buffer_atomic_umax v3, v1, s[{SRD_T}:{SRD_T + 3}], 0 offen offset:4")
            e(f"buffer_atomic_umax v4, v1, s[{SRD_T}:{SRD_T + 3}], 0 offen offset:8")
            for n in range(1, self.nts):
                e(f"s_sub_u32 s36, s{S_TS + 2 * n}, s{S_TS}")
                e(f"v_mov_b32 v{4 + n}, s36")
                e(f"buffer_atomic_add v{4 + n}, v1, s[{SRD_T}:{SRD_T + 3}], 0 offen offset:{4 * n + 8}")
            return
        e(f"s_mov_b32 s{SRD_T}, s{S_WS}")
        e(f"s_mov_b32 s{SRD_T + 1}, s{S_WS + 1}")
        e(f"s_mov_b32 s{SRD_T + 2}, 0x100000")
        e(f"s_mov_b32 s{SRD_T + 3}, 0x20000")
        e(f"s_lshl_b32 s37, s2, 3")
        e(f"s_add_u32 s37, s37, s{S_WV}")
        e(f"s_lshl_b32 s37, s37, 8")
        e("s_getreg_b32 s36, hwreg(HW_REG_XCC_ID)")
        e("v_mov_b32 v1, s37")
        e("v_mov_b32 v2, s36")
        e(f"buffer_store_dword v2, v1, s[{SRD_T}:{SRD_T + 3}], 0 offen offset:252")
        e("s_memrealtime s[36:37]")
        e("s_waitcnt lgkmcnt(0)")
        e("v_mov_b32 v3, s36")
        e(f"buffer_store_dword v3, v1, s[{SRD_T}:{SRD_T + 3}], 0 offen offset:248")
        e("v_mov_b32 v31, s50")
        e(f"buffer_store_dword v31, v1, s[{SRD_T}:{SRD_T + 3}], 0 offen offset:244")
        for n in range(self.nts):
            e(f"v_mov_b32 v{4 + n}, s{S_TS + 2 * n}")
            e(f"buffer_store_dword v{4 + n}, v1, s[{SRD_T}:{SRD_T + 3}], 0 offen offset:{4 * n}")

    def build(self):
        a = self.a
        e = self.e
        nthreads = 512 if a.loader else 256
        self.L.append(HEADER + f"; @launch grid=(256,1,1) block=({nthreads},1,1) lds={LDS_BYTES}")
        self.L.append(f""".amdgcn_target "amdgcn-amd-amdhsa--gfx950"
.text
.globl {NAME}_kernel
.p2align 8
.type {NAME}_kernel,@function
{NAME}_kernel:""")
        self.setup_common()
        n1 = a.n1
        if a.loader:
            e(f"s_cmp_ge_u32 s{S_WV}, 4")
            e("s_cbranch_scc1 L_loader")
        else:
            self.setup_dma()
            for u in self.prologue_units() + self.group(-1)[:n1]:
                for i in u:
                    e(i)
        self.setup_compute()
        self.ts()
        if a.loader:
            e("s_barrier")
        else:
            e(f"s_waitcnt vmcnt({12 + n1})")
            e("s_barrier")
        self.ts()
        for r in self.reads(0):
            e(r)

        def units(ks):
            if a.loader:
                return []
            if ks & 1:
                return self.group(ks >> 1)[:n1]
            return self.group((ks >> 1) - 1)[n1:]
        if a.full:
            for ks in range(32):
                self.kstep(ks, units(ks), last=(ks == 31))
                if ks % 8 == 7:
                    self.ts()
        else:
            e(f"s_mov_b32 s{S_CNT}, 3")
            self.L.append(".p2align 6")
            self.lab("L_loop")
            for ks in range(8):
                self.kstep(ks, units(ks))
            e(f"s_sub_u32 s{S_CNT}, s{S_CNT}, 1")
            e(f"s_cmp_lg_u32 s{S_CNT}, 0")
            e("s_cbranch_scc1 L_loop")
            self.ts()
            for ks in range(24, 32):
                self.kstep(ks, units(ks), last=(ks == 31))
            self.ts()
        self.epilogue()
        self.ts()
        self.stamps_out()
        self.lab("L_end")
        e("s_endpgm")
        if a.loader:
            self.lab("L_loader")
            e(f"s_sub_u32 s{S_WV}, s{S_WV}, 4")
            self.setup_dma()
            for u in self.prologue_units() + self.group(-1):
                for i in u:
                    e(i)
            e("s_waitcnt vmcnt(22)")
            e("s_barrier")
            for s in range(15):
                e(f"s_waitcnt vmcnt({self.bar_vmcnt(s)})")
                e("s_barrier")
                for u in self.group(s):
                    for i in u:
                        e(i)
            e("s_endpgm")
        self.L.append(f""".section .rodata,"a"
.p2align 6
.amdhsa_kernel {NAME}_kernel
  .amdhsa_next_free_vgpr 256
  .amdhsa_next_free_sgpr 102
  .amdhsa_accum_offset {ACCUM_OFFSET}
  .amdhsa_group_segment_fixed_size 0
  .amdhsa_kernarg_size 40
  .amdhsa_user_sgpr_count 2
  .amdhsa_user_sgpr_kernarg_segment_ptr 1
  .amdhsa_system_sgpr_workgroup_id_x 1
.end_amdhsa_kernel""")
        return "\n".join(self.L) + "\n"


def main():
    p = argparse.ArgumentParser()
    p.add_argument("-o", default="-")
    p.add_argument("--loader", type=int, default=0)
    p.add_argument("--full", type=int, default=0)
    p.add_argument("--stamp", type=int, default=0)
    p.add_argument("--n1", type=int, default=5)
    p.add_argument("--rdspan", type=int, default=18)
    p.add_argument("--dmaoff", type=int, default=8)
    p.add_argument("--xflags", default="")
    p.add_argument("--wflags", default="")
    p.add_argument("--oflags", default="")
    a = p.parse_args()
    for k in ("xflags", "wflags", "oflags"):
        v = getattr(a, k)
        if v:
            setattr(a, k, " " + v.replace(",", " "))
    s = G(a).build()
    if a.o == "-":
        sys.stdout.write(s)
    else:
        open(a.o, "w").write(s)


if __name__ == "__main__":
    main()
```

```python
import sys, argparse

NAME = "standalone__autoregressive_conv_wavernn__speech"

HEADER = """; Kernarg layout for this problem (40 bytes, ptrs only, base s[0:1]):
"""

XSLOT = 32768
WBASE = 65536
WSLOT = 24576
LDS_BYTES = 163840

S_X, S_W, S_O, S_DBG, S_WS = 4, 6, 8, 10, 40
SRD_X, SRD_W, SRD_O, SRD_T = 12, 16, 20, 44
S_WV, S_MT, S_NT, S_T0 = 24, 25, 26, 27
S_SOX, S_SOW, S_SOWP = 28, 29, 30
S_M0X, S_M0W = 31, 32
S_CNT = 33
S_T1, S_T2, S_T3 = 34, 35, 36
S_C1, S_C2 = 38, 48
S_TS = 52

V_XA, V_XB = 1, 5
V_WA = 9
V_DX = 13
V_DW = 21
V_T = 27
V_ACC = 32
ACCUM_OFFSET = 160


class G:
    def __init__(self, a):
        self.a = a
        self.L = []
        self.nts = 0

    def e(self, s):
        self.L.append("    " + s)

    def lab(self, s):
        self.L.append(s + ":")

    def c(self, s):
        self.L.append("    ; " + s)

    def ts(self):
        if self.a.stamp:
            op = "s_memrealtime" if self.a.stamp % 10 == 2 else "s_memtime"
            self.e(f"{op} s[{S_TS + 2 * self.nts}:{S_TS + 2 * self.nts + 1}]")
            self.nts += 1

    def fx(self, st, s):
        b = st * 48 + s * 4
        return f"a[{b}:{b + 3}]"

    def fw(self, st, i, g, half=None):
        b = st * 48 + 24 + (i * 2 + g) * 4
        if half is None:
            return f"a[{b}:{b + 3}]"
        return f"a[{b + 2 * half}:{b + 2 * half + 1}]"

    def acc(self, a_, g):
        b = V_ACC + (a_ * 2 + g) * 16
        return f"v[{b}:{b + 15}]"

    def reads(self, ks):
        st = ks & 1
        kk = ks & 3
        xs = (ks >> 2) & 1
        ws = (ks >> 1) & 3
        kh = ks & 1
        out = []

        def rx(s):
            if s < 4:
                out.append(f"ds_read_b128 {self.fx(st, s)}, v{V_XA + kk} offset:{xs * XSLOT + s * 256}")
            else:
                out.append(f"ds_read_b128 {self.fx(st, s)}, v{V_XB + kk} offset:{xs * XSLOT + (s - 4) * 256}")

        def rw(i, g):
            for u in range(2):
                off = (ws & 1) * WSLOT + i * 8192 + kh * 4096 + u * 1024
                out.append(f"ds_read_b64_tr_b16 {self.fw(st, i, g, u)}, v{V_WA + g * 2 + (ws >> 1)} offset:{off}")
        rw(0, 0); rx(0); rw(0, 1); rx(1); rx(2); rx(3)
        rw(1, 0); rw(1, 1); rx(4)
        rw(2, 0); rw(2, 1); rx(5)
        return out

    def mfmas(self, ks):
        st = ks & 1
        out = []
        for i in range(3):
            for a_ in range(4):
                for g in range(2):
                    out.append(f"v_mfma_f32_32x32x16_bf16 {self.acc(a_, g)}, {self.fw(st, i, g)}, {self.fx(st, a_ + i)}, {self.acc(a_, g)}")
        return out

    def dma_x(self, slot):
        u = []
        fl = self.a.xflags
        for p in range(8):
            pre = []
            if p % 4 == 0:
                pre = [f"s_add_u32 m0, s{S_M0X}, {slot * XSLOT + p * 1024}", "s_nop 0"]
            ins = pre + [f"buffer_load_dwordx4 v{V_DX + p}, s[{SRD_X}:{SRD_X + 3}], s{S_SOX} offen offset:{(p % 4) * 1024}{fl} lds"]
            if p == 7:
                ins.append(f"s_add_u32 s{S_SOX}, s{S_SOX}, 128")
            u.append(ins)
        return u

    def dma_w(self, slot, part, last):
        u = []
        fl = self.a.wflags
        ps = [4, 5] if part == "hi" else [0, 1, 2, 3]
        for p in ps:
            pre = []
            if p % 4 == 0:
                pre = [f"s_add_u32 m0, s{S_M0W}, {slot * WSLOT + p * 1024}", "s_nop 0"]
            ins = pre + [f"buffer_load_dwordx4 v{V_DW + p}, s[{SRD_W}:{SRD_W + 3}], s{S_SOW} offen offset:{(p % 4) * 1024}{fl} lds"]
            if last and p == ps[-1]:
                ins.append(f"s_add_u32 s{S_SOW}, s{S_SOW}, 65536")
            u.append(ins)
        return u

    def group(self, s):
        u = []
        if s & 1:
            if (s >> 1) + 2 < 8:
                u += self.dma_x((s >> 1) & 1)
            if s + 4 < 16:
                u += self.dma_w(s & 3, "hi", False)
        else:
            if s + 3 < 16:
                u += self.dma_w((s + 3) & 3, "lo", True)
            if s + 4 < 16:
                u += self.dma_w(s & 3, "hi", False) + self.dma_w(s & 3, "lo", True)
        return u

    def bar_vmcnt(self, s):
        if s == 13:
            return 6
        if s == 14:
            return 0
        return 12 if (s & 1) else 16

    def kstep(self, ks, dma_units, last=False):
        a = self.a
        s = ks >> 1
        self.c(f"---- k-step {ks}")
        m = self.mfmas(ks)
        rd = [] if last else self.reads(ks + 1)
        slots = [[] for _ in range(24)]
        first = 0
        head = []
        if ks & 1 and s < 15:
            if a.loader:
                head = ["s_waitcnt lgkmcnt(0)", "s_barrier"]
            else:
                head = [f"s_waitcnt vmcnt({self.bar_vmcnt(s)}) lgkmcnt(0)", "s_barrier"]
        else:
            head = ["s_waitcnt lgkmcnt(0)"]
        for h in head:
            self.e(h)
        for n, r in enumerate(rd):
            slots[n * a.rdspan // 18].append(r)
        nd = len(dma_units)
        for n, u in enumerate(dma_units):
            pos = (n * 24 + a.dmaoff) // max(nd, 1) if nd else 0
            slots[min(pos, 23)] += u
        for i in range(24):
            self.e(m[i])
            for f in slots[i]:
                self.e(f)

    def setup_common(self):
        e = self.e
        e("s_cmp_ge_u32 s2, 256")
        e("s_cbranch_scc1 L_end")
        e(f"s_load_dwordx4 s[{S_X}:{S_X + 3}], s[0:1], 0")
        e(f"s_load_dwordx2 s[{S_O}:{S_O + 1}], s[0:1], 16")
        if self.a.stamp:
            e(f"s_load_dwordx2 s[{S_WS}:{S_WS + 1}], s[0:1], {24 if self.a.stamp >= 10 else 32}")
            e("s_memrealtime s[50:51]")
        self.ts()
        e("v_lshrrev_b32 v27, 6, v0")
        e("v_and_b32 v0, 63, v0")
        e(f"v_readfirstlane_b32 s{S_WV}, v27")
        e(f"s_lshr_b32 s{S_T1}, s2, 3")
        e(f"s_bfe_u32 s{S_MT}, s2, 0x20001")
        e(f"s_lshl_b32 s{S_MT}, s{S_MT}, 3")
        e(f"s_lshr_b32 s{S_T2}, s{S_T1}, 2")
        e(f"s_add_u32 s{S_MT}, s{S_MT}, s{S_T2}")
        e(f"s_and_b32 s{S_NT}, s2, 1")
        e(f"s_lshl_b32 s{S_NT}, s{S_NT}, 2")
        e(f"s_and_b32 s{S_T2}, s{S_T1}, 3")
        e(f"s_add_u32 s{S_NT}, s{S_NT}, s{S_T2}")
        e(f"s_and_b32 s{S_T0}, s{S_MT}, 15")
        e(f"s_mul_i32 s{S_T0}, s{S_T0}, 250")
        e(f"s_lshr_b32 s{S_T3}, s{S_MT}, 4")
        e(f"s_mul_i32 s{S_T3}, s{S_T3}, 4096000")

    def setup_dma(self):
        e = self.e
        e(f"s_lshl_b32 s{S_T1}, s{S_WV}, 6")
        e(f"s_add_u32 s{S_T1}, s{S_T1}, s{S_T0}")
        e(f"s_sub_u32 s{S_T1}, s{S_T1}, 4")
        e("v_lshrrev_b32 v27, 3, v0")
        e(f"v_add_u32 v27, s{S_T1}, v27")
        e("v_and_b32 v28, 7, v0")
        e("v_cmp_gt_i32 vcc, 0, v27")
        e("v_lshlrev_b32 v27, 10, v27")
        e("v_lshlrev_b32 v28, 4, v28")
        for pp in range(8):
            e(f"v_xor_b32 v29, {pp * 16}, v28")
            k = pp * 8192 - (pp & 3) * 1024
            if k:
                e(f"v_add_u32 v29, {k}, v29")
            e(f"v_add_u32 v{V_DX + pp}, v27, v29")
        e(f"v_mov_b32 v29, 0x80000000")
        e(f"v_cndmask_b32 v{V_DX}, v{V_DX}, v29, vcc")
        e("v_lshrrev_b32 v27, 4, v0")
        e("v_bfe_u32 v28, v0, 2, 2")
        e("v_xor_b32 v28, v27, v28")
        e("v_lshlrev_b32 v27, 11, v27")
        e("v_and_b32 v29, 1, v28")
        e("v_lshl_add_u32 v27, v29, 6, v27")
        e("v_lshrrev_b32 v29, 1, v28")
        e("v_lshl_add_u32 v27, v29, 10, v27")
        e("v_and_b32 v29, 3, v0")
        e("v_lshl_add_u32 v27, v29, 4, v27")
        e(f"s_lshl_b32 s{S_T1}, s{S_NT}, 7")
        e(f"v_add_u32 v27, s{S_T1}, v27")
        e(f"s_mul_i32 s{S_T1}, s{S_WV}, 6")
        for pp in range(6):
            e(f"s_add_u32 s{S_T2}, s{S_T1}, {pp}")
            e(f"s_lshr_b32 s37, s{S_T2}, 3")
            e(f"s_lshl_b32 s37, s37, 20")
            e(f"s_and_b32 s{S_T2}, s{S_T2}, 7")
            e(f"s_lshl_b32 s{S_T2}, s{S_T2}, 13")
            e(f"s_add_u32 s{S_T2}, s{S_T2}, s37")
            if pp & 3:
                e(f"s_sub_u32 s{S_T2}, s{S_T2}, {(pp & 3) * 1024}")
            e(f"v_add_u32 v{V_DW + pp}, s{S_T2}, v27")
        e(f"s_lshl_b32 s{S_M0X}, s{S_WV}, 13")
        e(f"s_mul_i32 s{S_M0W}, s{S_WV}, 6144")
        e(f"s_add_u32 s{S_M0W}, s{S_M0W}, {WBASE}")
        e(f"s_mov_b32 s{S_SOX}, 0")
        e(f"s_mov_b32 s{S_SOW}, 0")
        e(f"s_mov_b32 s{SRD_X + 2}, 4096000")
        e(f"s_mov_b32 s{SRD_X + 3}, 0x20000")
        e(f"s_mov_b32 s{SRD_W + 2}, 3145728")
        e(f"s_mov_b32 s{SRD_W + 3}, 0x20000")
        e("s_waitcnt lgkmcnt(0)")
        e(f"s_add_u32 s{SRD_X}, s{S_X}, s{S_T3}")
        e(f"s_addc_u32 s{SRD_X + 1}, s{S_X + 1}, 0")
        e(f"s_mov_b32 s{SRD_W}, s{S_W}")
        e(f"s_mov_b32 s{SRD_W + 1}, s{S_W + 1}")

    def prologue_units(self):
        u = self.dma_x(0)
        for st in range(3):
            u += self.dma_w(st, "hi", False) + self.dma_w(st, "lo", True)
        return u

    def setup_compute(self):
        e = self.e
        e(f"s_lshr_b32 s{S_T1}, s{S_WV}, 1")
        e(f"s_and_b32 s{S_T2}, s{S_WV}, 1")
        e("v_bfe_u32 v27, v0, 1, 4")
        e("v_and_b32 v28, 1, v0")
        e("v_lshrrev_b32 v29, 5, v0")
        e("v_lshl_add_u32 v30, v27, 3, v28")
        e(f"s_lshl_b32 s37, s{S_T1}, 7")
        e(f"v_add_u32 v30, s37, v30")
        e("v_lshlrev_b32 v31, 7, v30")
        e("v_and_b32 v28, 7, v27")
        e("v_xor_b32 v28, v28, v29")
        for kk in range(4):
            e(f"v_xor_b32 v{V_XA + kk}, {2 * kk}, v28")
            e(f"v_lshl_add_u32 v{V_XA + kk}, v{V_XA + kk}, 4, v31")
        e("v_add_u32 v28, 1, v27")
        e("v_and_b32 v28, 7, v28")
        e("v_xor_b32 v28, v28, v29")
        e("v_add_u32 v31, 1024, v31")
        for kk in range(4):
            e(f"v_xor_b32 v{V_XB + kk}, {2 * kk}, v28")
            e(f"v_lshl_add_u32 v{V_XB + kk}, v{V_XB + kk}, 4, v31")
        e("v_lshlrev_b32 v30, 10, v30")
        e("v_lshl_add_u32 v30, v29, 5, v30")
        e(f"s_lshl_b32 s37, s{S_NT}, 1")
        e(f"s_add_u32 s37, s37, s{S_T2}")
        e(f"s_lshl_b32 s37, s37, 6")
        e(f"v_add_u32 v30, s37, v30")
        e("v_bfe_u32 v27, v0, 2, 2")
        e("v_lshl_add_u32 v28, v29, 3, v27")
        e("v_lshlrev_b32 v28, 8, v28")
        e("v_and_b32 v31, 1, v0")
        e("v_lshl_add_u32 v28, v31, 5, v28")
        e("v_bfe_u32 v31, v0, 1, 1")
        e("v_lshl_add_u32 v28, v31, 3, v28")
        e("v_bfe_u32 v31, v0, 4, 1")
        e("v_lshl_add_u32 v28, v31, 4, v28")
        e(f"v_add_u32 v28, {WBASE}, v28")
        for g in range(2):
            e(f"s_add_u32 s37, s{S_T2}, {2 * g}")
            e(f"v_xor_b32 v31, s37, v27")
            e(f"v_lshl_add_u32 v{V_WA + 2 * g}, v31, 6, v28")
            e(f"v_add_u32 v{V_WA + 2 * g + 1}, {2 * WSLOT}, v{V_WA + 2 * g}")
        for i in range(128):
            e(f"v_mov_b32 v{V_ACC + i}, 0")
        e(f"s_lshl_b32 s37, s{S_T0}, 10")
        e(f"s_add_u32 s37, s37, s{S_T3}")
        e(f"s_mov_b32 s{SRD_O + 2}, 256000")
        e(f"s_mov_b32 s{SRD_O + 3}, 0x20000")
        e(f"s_mov_b32 s{S_C1}, 0xc038aa3b")
        e(f"s_mov_b32 s{S_C1 + 1}, 0xc038aa3b")
        e(f"s_mov_b32 s{S_C2}, 0xbfb8aa3b")
        e(f"s_mov_b32 s{S_C2 + 1}, 0xbfb8aa3b")
        e("s_waitcnt lgkmcnt(0)")
        e(f"s_add_u32 s{SRD_O}, s{S_O}, s37")
        e(f"s_addc_u32 s{SRD_O + 1}, s{S_O + 1}, 0")

    def epilogue(self):
        e = self.e
        self.c("---- epilogue: tanh(f)*sigmoid(g) = (1-ea) / ((1+ea)(1+eb)), ea = e^(-2f), eb = e^(-g)")
        e("s_nop 7")
        e("s_nop 3")
        for a_ in range(4):
            F = V_ACC + (a_ * 2) * 16
            Gg = F + 16
            for r in range(0, 16, 2):
                e(f"v_pk_mul_f32 v[{F + r}:{F + r + 1}], v[{F + r}:{F + r + 1}], s[{S_C1}:{S_C1 + 1}]")
                e(f"v_pk_mul_f32 v[{Gg + r}:{Gg + r + 1}], v[{Gg + r}:{Gg + r + 1}], s[{S_C2}:{S_C2 + 1}]")
            for r in range(16):
                e(f"v_min_f32 v{F + r}, 0x41f00000, v{F + r}")
                e(f"v_exp_f32 v{Gg + r}, v{Gg + r}")
            for r in range(16):
                e(f"v_exp_f32 v{F + r}, v{F + r}")
            T = 2
            for r in range(0, 16, 2):
                e(f"v_pk_add_f32 v[{T + r}:{T + r + 1}], v[{F + r}:{F + r + 1}], 1.0 op_sel_hi:[1,0]")
            for r in range(0, 16, 2):
                e(f"v_pk_fma_f32 v[{Gg + r}:{Gg + r + 1}], v[{T + r}:{T + r + 1}], v[{Gg + r}:{Gg + r + 1}], v[{T + r}:{T + r + 1}]")
            for r in range(0, 16, 2):
                e(f"v_rcp_f32 v{Gg + r}, v{Gg + r}")
                e(f"v_rcp_f32 v{Gg + r + 1}, v{Gg + r + 1}")
                e(f"v_pk_add_f32 v[{F + r}:{F + r + 1}], v[{F + r}:{F + r + 1}], 1.0 op_sel_hi:[1,0] neg_lo:[1,0] neg_hi:[1,0]")
            for r in range(0, 16, 2):
                e(f"v_pk_mul_f32 v[{F + r}:{F + r + 1}], v[{F + r}:{F + r + 1}], v[{Gg + r}:{Gg + r + 1}]")
            for r in range(0, 16, 2):
                e(f"v_cvt_pk_bf16_f32 v{Gg + r // 2}, v{F + r}, v{F + r + 1}")
            if a_ == 2:
                e("v_add_u32 v30, 4096, v30")
            off = (a_ & 1) * 2048
            e(f"buffer_store_dwordx4 v[{Gg}:{Gg + 3}], v30, s[{SRD_O}:{SRD_O + 3}], 0 offen offset:{off}{self.a.oflags}")
            e(f"buffer_store_dwordx4 v[{Gg + 4}:{Gg + 7}], v30, s[{SRD_O}:{SRD_O + 3}], 0 offen offset:{off + 16}{self.a.oflags}")

    def stamps_out(self):
        if not self.a.stamp:
            return
        e = self.e
        e("s_waitcnt vmcnt(0)")
        self.ts()
        e("s_waitcnt lgkmcnt(0)")
        if self.a.stamp >= 20:
            i, j, K, base = self.a.spin
            e(f"s_sub_u32 s36, s{S_TS + 2 * j}, s{S_TS + 2 * i}")
            e(f"s_mul_i32 s36, s36, {K}")
            e(f"s_add_u32 s36, s36, {base}")
            e(f"s_min_u32 s36, s36, 100000")
            self.lab("L_spin")
            e("s_memrealtime s[42:43]")
            e("s_waitcnt lgkmcnt(0)")
            e("s_sub_u32 s42, s42, s50")
            e("s_cmp_lt_u32 s42, s36")
            e("s_cbranch_scc1 L_spin")
            return
        if self.a.stamp >= 10:
            e(f"s_mov_b32 s{SRD_T}, s{S_WS}")
            e(f"s_mov_b32 s{SRD_T + 1}, s{S_WS + 1}")
            e(f"s_mov_b32 s{SRD_T + 2}, 256")
            e(f"s_mov_b32 s{SRD_T + 3}, 0x20000")
            e("s_memrealtime s[36:37]")
            e("s_waitcnt lgkmcnt(0)")
            e("s_mov_b64 exec, 1")
            e("v_mov_b32 v1, 0")
            e("v_mov_b32 v2, s36")
            e("s_not_b32 s36, s50")
            e("v_mov_b32 v3, s36")
            e("v_mov_b32 v4, s50")
            e(f"buffer_atomic_umax v2, v1, s[{SRD_T}:{SRD_T + 3}], 0 offen offset:0")
            e(f"buffer_atomic_umax v3, v1, s[{SRD_T}:{SRD_T + 3}], 0 offen offset:4")
            e(f"buffer_atomic_umax v4, v1, s[{SRD_T}:{SRD_T + 3}], 0 offen offset:8")
            for n in range(1, self.nts):
                e(f"s_sub_u32 s36, s{S_TS + 2 * n}, s{S_TS}")
                e(f"v_mov_b32 v{4 + n}, s36")
                e(f"buffer_atomic_add v{4 + n}, v1, s[{SRD_T}:{SRD_T + 3}], 0 offen offset:{4 * n + 8}")
            return
        e(f"s_mov_b32 s{SRD_T}, s{S_WS}")
        e(f"s_mov_b32 s{SRD_T + 1}, s{S_WS + 1}")
        e(f"s_mov_b32 s{SRD_T + 2}, 0x100000")
        e(f"s_mov_b32 s{SRD_T + 3}, 0x20000")
        e(f"s_lshl_b32 s37, s2, 3")
        e(f"s_add_u32 s37, s37, s{S_WV}")
        e(f"s_lshl_b32 s37, s37, 8")
        e("s_getreg_b32 s36, hwreg(HW_REG_XCC_ID)")
        e("v_mov_b32 v1, s37")
        e("v_mov_b32 v2, s36")
        e(f"buffer_store_dword v2, v1, s[{SRD_T}:{SRD_T + 3}], 0 offen offset:252")
        e("s_memrealtime s[36:37]")
        e("s_waitcnt lgkmcnt(0)")
        e("v_mov_b32 v3, s36")
        e(f"buffer_store_dword v3, v1, s[{SRD_T}:{SRD_T + 3}], 0 offen offset:248")
        e("v_mov_b32 v31, s50")
        e(f"buffer_store_dword v31, v1, s[{SRD_T}:{SRD_T + 3}], 0 offen offset:244")
        for n in range(self.nts):
            e(f"v_mov_b32 v{4 + n}, s{S_TS + 2 * n}")
            e(f"buffer_store_dword v{4 + n}, v1, s[{SRD_T}:{SRD_T + 3}], 0 offen offset:{4 * n}")

    def build(self):
        a = self.a
        e = self.e
        nthreads = 512 if a.loader else 256
        self.L.append(HEADER + f"; @launch grid=(256,1,1) block=({nthreads},1,1) lds={LDS_BYTES}")
        self.L.append(f""".amdgcn_target "amdgcn-amd-amdhsa--gfx950"
.text
.globl {NAME}_kernel
.p2align 8
.type {NAME}_kernel,@function
{NAME}_kernel:""")
        self.setup_common()
        n1 = a.n1
        if a.loader:
            e(f"s_cmp_ge_u32 s{S_WV}, 4")
            e("s_cbranch_scc1 L_loader")
        else:
            self.setup_dma()
            for u in self.prologue_units() + self.group(-1)[:n1]:
                for i in u:
                    e(i)
        self.setup_compute()
        self.ts()
        if a.loader:
            e("s_barrier")
        else:
            e(f"s_waitcnt vmcnt({12 + n1})")
            e("s_barrier")
        self.ts()
        for r in self.reads(0):
            e(r)

        def units(ks):
            if a.loader:
                return []
            if ks & 1:
                return self.group(ks >> 1)[:n1]
            return self.group((ks >> 1) - 1)[n1:]
        if a.full:
            for ks in range(32):
                self.kstep(ks, units(ks), last=(ks == 31))
                if ks % 8 == 7:
                    self.ts()
        else:
            e(f"s_mov_b32 s{S_CNT}, 3")
            self.L.append(".p2align 6")
            self.lab("L_loop")
            for ks in range(8):
                self.kstep(ks, units(ks))
            e(f"s_sub_u32 s{S_CNT}, s{S_CNT}, 1")
            e(f"s_cmp_lg_u32 s{S_CNT}, 0")
            e("s_cbranch_scc1 L_loop")
            self.ts()
            for ks in range(24, 32):
                self.kstep(ks, units(ks), last=(ks == 31))
            self.ts()
        self.epilogue()
        self.ts()
        self.stamps_out()
        self.lab("L_end")
        e("s_endpgm")
        if a.loader:
            self.lab("L_loader")
            e(f"s_sub_u32 s{S_WV}, s{S_WV}, 4")
            self.setup_dma()
            for u in self.prologue_units() + self.group(-1):
                for i in u:
                    e(i)
            e("s_waitcnt vmcnt(22)")
            e("s_barrier")
            for s in range(15):
                e(f"s_waitcnt vmcnt({self.bar_vmcnt(s)})")
                e("s_barrier")
                for u in self.group(s):
                    for i in u:
                        e(i)
            e("s_endpgm")
        self.L.append(f""".section .rodata,"a"
.p2align 6
.amdhsa_kernel {NAME}_kernel
  .amdhsa_next_free_vgpr 256
  .amdhsa_next_free_sgpr 102
  .amdhsa_accum_offset {ACCUM_OFFSET}
  .amdhsa_group_segment_fixed_size 0
  .amdhsa_kernarg_size 40
  .amdhsa_user_sgpr_count 2
  .amdhsa_user_sgpr_kernarg_segment_ptr 1
  .amdhsa_system_sgpr_workgroup_id_x 1
.end_amdhsa_kernel""")
        return "\n".join(self.L) + "\n"


def main():
    p = argparse.ArgumentParser()
    p.add_argument("-o", default="-")
    p.add_argument("--loader", type=int, default=0)
    p.add_argument("--full", type=int, default=0)
    p.add_argument("--stamp", type=int, default=0)
    p.add_argument("--spin", type=lambda t: [int(x) for x in t.split(",")], default=[0, 0, 0, 4000])
    p.add_argument("--n1", type=int, default=5)
    p.add_argument("--rdspan", type=int, default=18)
    p.add_argument("--dmaoff", type=int, default=8)
    p.add_argument("--xflags", default="")
    p.add_argument("--wflags", default="")
    p.add_argument("--oflags", default="")
    a = p.parse_args()
    for k in ("xflags", "wflags", "oflags"):
        v = getattr(a, k)
        if v:
            setattr(a, k, " " + v.replace(",", " "))
    s = G(a).build()
    if a.o == "-":
        sys.stdout.write(s)
    else:
        open(a.o, "w").write(s)


if __name__ == "__main__":
    main()
```
